```python
import torch

def _softmax(x, axis=-1):
    return torch.softmax(x, dim=axis)

def _gelu(x):
    return torch.nn.functional.gelu(x, approximate='tanh')

def _silu(x):
    return torch.nn.functional.silu(x)

def _sigmoid(x):
    return torch.sigmoid(x)

def _layernorm(x, axis=-1, eps=1e-05):
    m = x.mean(dim=axis, keepdim=True)
    v = x.var(dim=axis, keepdim=True, unbiased=False)
    return (x - m) / torch.sqrt(v + eps)

def _scatter_add(tgt, idx, src, axis=0):
    return tgt.clone().index_add_(axis, idx, src)

def _segment_sum(src, seg, n):
    out = torch.zeros((n,) + src.shape[1:], dtype=src.dtype)
    return out.index_add_(0, seg, src)

def _pad(x, pw):
    flat = tuple((v for pair in reversed(pw) for v in pair))
    return torch.nn.functional.pad(x, flat)
kernel_name = 'adaLN_cond__mha_block_cached__dense_activation_silu__decode'

def setup_inputs():

    _w = lambda a: (lambda t: t.to(torch.bfloat16) if t.is_floating_point() else t)(torch.as_tensor(a))

    def _A_setup():
        B, Sq, D = (4, 1, 512)
        H, Sk, Dh = (32, 4096, 128)
        return {'x': _w((lambda *s: torch.randn(*s, dtype=torch.bfloat16) * 0.1)(B, Sq, D)), 'k_cache': _w((lambda *s: torch.randn(*s, dtype=torch.bfloat16) * 0.8)(B, H, Sk, Dh)), 'v_cache': _w((lambda *s: torch.randn(*s, dtype=torch.bfloat16) * 3.2)(B, H, Sk, Dh)), 'wq': _w((lambda *s: torch.randn(*s, dtype=torch.bfloat16) * 0.8)(D, H * Dh) * D ** (-0.5)), 'wo': _w((lambda *s: torch.randn(*s, dtype=torch.bfloat16) * 3.2)(H * Dh, D) * (H * Dh) ** (-0.5))}
    _A_in = _A_setup()

    def _B_setup():
        B, S, D, F = (4, 1, 512, 1792)
        return {'x': _w((lambda *s: torch.randn(*s, dtype=torch.bfloat16) * 0.1)(B, S, D)), 'w1': _w((lambda *s: torch.randn(*s, dtype=torch.bfloat16) * 3.2)(D, F) * D ** (-0.5)), 'w2': _w((lambda *s: torch.randn(*s, dtype=torch.bfloat16) * 3.2)(F, D) * F ** (-0.5))}
    _B_in = _B_setup()
    return {'A_x': _A_in['x'], 'A_k_cache': _A_in['k_cache'], 'A_v_cache': _A_in['v_cache'], 'A_wq': _A_in['wq'], 'A_wo': _A_in['wo'], 'B_x': _B_in['x'], 'B_w1': _B_in['w1'], 'B_w2': _B_in['w2'], 'c': _w((lambda *s: torch.randn(*s, dtype=torch.bfloat16) * 0.1)(4, 512) * 8.0), 'w_mod': _w((lambda *s: torch.randn(*s, dtype=torch.bfloat16) * 0.1)(512, 6 * 512) * 512 ** (-0.5) * 8.0)}

def reference(A_x, A_k_cache, A_v_cache, A_wq, A_wo, B_x, B_w1, B_w2, c, w_mod):

    def _A_ref(x, k_cache, v_cache, wq, wo):
        B, Sq, D = x.shape
        H, Dh = (32, 128)
        q = (lambda x, *d: x.permute(*d))((x @ wq).reshape(B, Sq, H, Dh), 0, 2, 1, 3)
        scores = torch.einsum('bhqd,bhkd->bhqk', q, k_cache) * Dh ** (-0.5)
        p = _softmax(scores, axis=-1)
        o = torch.einsum('bhqk,bhkd->bhqd', p, v_cache)
        return (lambda x, *d: x.permute(*d))(o, 0, 2, 1, 3).reshape(B, Sq, H * Dh) @ wo

    def _B_ref(x, w1, w2):
        h = torch.einsum('bsd,df->bsf', x, w1)
        h = _silu(h)
        out = torch.einsum('bsf,fd->bsd', h, w2)
        return out
    x = A_x
    mod = (_silu(c) @ w_mod).reshape(c.shape[0], 6, 1, -1)
    sa, ca, ga, sb, cb, gb = (mod[:, 0].clone(), mod[:, 1].clone(), mod[:, 2].clone(), mod[:, 3].clone(), mod[:, 4].clone(), mod[:, 5].clone())
    h = _layernorm(x, axis=-1) * (1 + ca) + sa
    x = x + ga * _A_ref(h, A_k_cache, A_v_cache, A_wq, A_wo)
    h = _layernorm(x, axis=-1) * (1 + cb) + sb
    x = x + gb * _B_ref(h, B_w1, B_w2)
    return x
```

```python
import re
TRANS=('v_exp_f32','v_log_f32','v_rcp_f32','v_rsq_f32','v_sqrt_f32')
def regs(tok):
    tok=tok.strip().lstrip('-')
    if tok.startswith('abs('): tok=tok[4:-1]
    if tok.startswith('|'): tok=tok.strip('|')
    m=re.fullmatch(r'([vs])\[(\d+):(\d+)\]',tok)
    if m: return [(m.group(1),i) for i in range(int(m.group(2)),int(m.group(3))+1)]
    m=re.fullmatch(r'([vs])(\d+)',tok)
    if m: return [(m.group(1),int(m.group(2)))]
    if tok=='vcc': return [('s',106),('s',107)]
    if tok=='m0': return [('s',124)]
    return []
class Ins:
    def __init__(s,text):
        s.text=text
        t=text.split(';')[0].strip()
        s.op=t.split()[0]
        rest=t[len(s.op):].strip()
        ops=[]
        for i,o in enumerate(re.split(r',\s*(?![^\[]*\])',rest)):
            o=o.strip()
            if o: ops.append(o.split()[0])
        s.ops=ops
        op=s.op
        s.valu=op.startswith('v_'); s.mfma=op.startswith('v_mfma'); s.dot=op.startswith('v_dot')
        s.dpp='_dpp' in op; s.perml=op.startswith('v_permlane'); s.trans=op in TRANS
        s.rdl=op.startswith('v_readlane') or op.startswith('v_readfirstlane')
        s.vmem=op.startswith('buffer_') or op.startswith('global_'); s.ds=op.startswith('ds_')
        s.lds_dma=s.vmem and t.endswith(' lds')
        R=[regs(o) for o in ops]
        s.w=[];s.r=[];s.srcc=[];s.sdata=[]
        if s.valu:
            if op=='v_nop': pass
            elif s.perml: s.w=R[0]+R[1]; s.r=R[0]+R[1]
            else:
                s.w=R[0]; s.r=sum(R[1:],[])
                if s.dpp or op.startswith('v_fmac') or op.startswith('v_dot2c') or op.startswith('v_writelane'): s.r=s.r+R[0]
                if s.mfma or op=='v_dot2_f32_bf16': s.srcc=R[3]; s.ab=R[1]+R[2]
        elif s.vmem:
            if s.lds_dma: s.r=sum(R,[])+[('s',124)]
            elif '_load_' in op: s.w=R[0]; s.r=sum(R[1:],[])
            else:
                s.r=sum(R,[])
                if 'x4' in op or 'x3' in op: s.sdata=R[0]
                if 'atomic' in op and ' sc0' in t: s.w=R[0]
        elif s.ds:
            if op.startswith('ds_read') or 'permute' in op or '_rtn' in op: s.w=R[0]; s.r=sum(R[1:],[])
            else: s.r=sum(R,[])
        elif op.startswith('s_') and ops and not op.startswith('s_cmp') and not op.startswith('s_cbranch'):
            s.w=R[0]; s.r=sum(R[1:],[])
        elif op.startswith('s_cmp'): s.r=sum(R,[])
    def states(s):
        if s.op=='s_nop': return int(s.ops[0])+1
        return 1
def need(p,c):
    n=0
    pw=set(p.w); cr=set(c.r); cw=set(c.w)
    vw={x for x in pw if x[0]=='v'}; sw={x for x in pw if x[0]=='s'}
    if p.mfma:
        passes=8 if '32x32' in p.op else 4
        big={4:8,8:12}[passes]
        if c.mfma:
            if vw&set(c.ab): n=max(n,big)
            if vw&set(c.srcc) and set(c.srcc)!=vw: n=max(n,big-2)
            if vw&cw and not (vw&set(c.srcc)): n=max(n,big)
        elif (c.valu or c.vmem or c.ds) and vw&(cr|cw): n=max(n,big)
        if c.valu and not c.mfma and set(p.srcc)&cw: n=max(n,passes-1)
    elif p.valu:
        if p.dot:
            if c.op==p.op:
                if vw&set(c.ab): n=max(n,3)
            elif (c.valu or c.vmem or c.ds) and vw&(cr|cw): n=max(n,3)
        if c.mfma and vw&cr: n=max(n,2)
        if (c.dpp or c.perml) and vw&cr: n=max(n,2)
        if c.rdl and vw&cr: n=max(n,1)
        if p.trans and c.valu and not c.trans and vw&cr: n=max(n,1)
        if sw:
            if c.valu and sw&cr: n=max(n,4 if (c.rdl or c.op.startswith('v_writelane')) else 2)
            if c.vmem and sw&cr: n=max(n,5)
    elif p.vmem and p.sdata:
        if set(p.sdata)&cw: n=max(n,2)
    elif ('s',124) in pw and c.lds_dma: n=max(n,1)
    return n
class Asm:
    def __init__(s): s.L=[]; s.nlab=0
    def __call__(s,text):
        for line in text.split('\n'):
            line=line.strip()
            if line: s.L.append(line)
    def lab(s,base):
        s.nlab+=1; return f"L_{base}_{s.nlab}"
    def finish(s):
        out=[]; hist=[]; added=0
        for line in s.L:
            if line.endswith(':') or line.startswith('.') or line.startswith(';'):
                out.append(line); continue
            c=Ins(line)
            dist=0; req=0
            for p in reversed(hist):
                req=max(req,need(p,c)-dist)
                dist+=p.states()
                if dist>=12: break
            if req>0:
                nop=Ins(f"s_nop {req-1}"); hist.append(nop); out.append("  "+nop.text); added+=req
            hist.append(c); out.append("  "+line)
            if len(hist)>40: hist=hist[-20:]
        return "\n".join(out)+"\n"
```

```python
import sys
from asmlib import Asm
NAME="adaLN_cond__mha_block_cached__dense_activation_silu__decode"
MODO=0x1000; X1O=0xE000; STO=0x10000; DIAGO=0x20000; QPO=0x100000; YO=0x200000; ZO=0x280000; WSN=0x300000
L_CM=0; L_CS=4; L_ST=64; L_F=128; L_Q=256; L_HA=512; L_O=1024; L_MP=2048; L_H2=6144; H2S=1088
L_FP=10752; L_FA=12800; L_PARK=16384; LDSN=16384+4*6*1024
C_EXP=0.08838834764831845*1.4426950408889634
import struct
def fb(x): return "0x%08x"%struct.unpack('<I',struct.pack('<f',x))[0]
LOG2E=fb(1.4426950408889634)
SPIN=200000

def gen(diag=False, LA=3, NP=13, opt=None):
    opt=opt or {}
    A=Asm()
    K=NAME+"_kernel"
    def stamp(k,vd):
        if diag: A(f"s_memrealtime s[96:97]\ns_waitcnt lgkmcnt(0)\nv_writelane_b32 v{vd}, s96, {k}")
    def dump(vd):
        if diag:
            A(f"""s_mov_b64 exec, 0xffff
            s_lshl_b32 s88, s2, 9
            s_lshl_b32 s89, s3, 6
            s_add_u32 s88, s88, s89
            s_add_u32 s88, s88, {DIAGO}
            v_lshlrev_b32 v4, 2, v1
            buffer_store_dword v{vd}, v4, s[44:47], s88 offen
            s_waitcnt vmcnt(0)""")
    def srd(d,p,n): A(f"s_mov_b32 s{d}, s{p}\ns_mov_b32 s{d+1}, s{p+1}\ns_mov_b32 s{d+2}, {n}\ns_mov_b32 s{d+3}, 0x20000")
    def V(r,n): return f"v[{r}:{r+n-1}]" if n>1 else f"v{r}"
    def ldn(n): return {1:'dword',2:'dwordx2',4:'dwordx4'}[n]
    def transpose(src,dst,E):
        q=E//2
        for e in range(E):
            for p in range(4):
                A(f"v_perm_b32 v{dst+4*e+p}, v{src+(2*p+1)*q+e//2}, v{src+(2*p)*q+e//2}, s{86+(e&1)}")
    def poll(loads,check,sleep=1):
        lp=A.lab('poll'); dn=A.lab('pdone')
        A(f"s_mov_b32 s90, {SPIN}\n{lp}:")
        loads(); A("s_waitcnt vmcnt(0)"); check()
        A(f"s_cbranch_vccz {dn}")
        if sleep: A(f"s_sleep {sleep}")
        A(f"s_sub_u32 s90, s90, 1\ns_cmp_lg_u32 s90, 0\ns_cbranch_scc1 {lp}\n{dn}:")
    def chk_tags(rs):
        def f():
            A(f"v_cmp_ne_u64 vcc, s[84:85], v[{rs[0]+2}:{rs[0]+3}]")
            for r in rs[1:]:
                A(f"v_cmp_ne_u64 s[92:93], s[84:85], v[{r+2}:{r+3}]\ns_or_b64 vcc, vcc, s[92:93]")
        return f
    def chk_sent(r0,n,t):
        def f():
            rs=list(range(r0,r0+n))
            A(f"v_max3_u32 v{t}, v{rs[0]}, v{rs[1]}, v{rs[2]}"); rs=rs[3:]
            while len(rs)>=2: A(f"v_max3_u32 v{t}, v{t}, v{rs[0]}, v{rs[1]}"); rs=rs[2:]
            if rs: A(f"v_max_u32 v{t}, v{t}, v{rs[0]}")
            A(f"v_cmp_eq_u32 vcc, -1, v{t}")
        return f
    def ldsspin(addr,target,t,sleep=1):
        lp=A.lab('lsp'); dn=A.lab('ldone')
        A(f"s_mov_b32 s90, {SPIN*4}\nv_mov_b32 v{t+1}, 0\n{lp}:\nds_read_b32 v{t}, v{t+1} offset:{addr}\ns_waitcnt lgkmcnt(0)\nv_readfirstlane_b32 s91, v{t}\ns_cmp_ge_u32 s91, {target}\ns_cbranch_scc1 {dn}")
        if sleep: A(f"s_sleep {sleep}")
        A(f"s_sub_u32 s90, s90, 1\ns_cmp_lg_u32 s90, 0\ns_cbranch_scc1 {lp}\n{dn}:")
    def ldsinc(addr,t):
        A(f"s_waitcnt lgkmcnt(0)\ns_mov_b64 exec, 1\nv_mov_b32 v{t}, 1\nv_mov_b32 v{t+1}, 0\nds_add_u32 v{t+1}, v{t} offset:{addr}\ns_mov_b64 exec, -1")
    def rowsum(rs,op='add'):
        for sh in (8,4,2,1):
            for r in rs: A(f"v_{op}_f32_dpp v{r}, v{r}, v{r} row_ror:{sh} row_mask:0xf bank_mask:0xf")
    def xrow(rs,ts,op='add'):
        for sw in ('16','32'):
            for r,t in zip(rs,ts): A(f"v_mov_b32 v{t}, v{r}")
            for r,t in zip(rs,ts): A(f"v_permlane{sw}_swap_b32 v{r}, v{t}")
            for r,t in zip(rs,ts): A(f"v_{op}_f32 v{r}, v{r}, v{t}")
    def unpack(src,n,dst):
        for i in range(n):
            A(f"v_lshlrev_b32 v{dst+2*i}, 16, v{src+i}\nv_and_b32 v{dst+2*i+1}, 0xffff0000, v{src+i}")
    def silu(rs,ts):
        for r,t in zip(rs,ts): A(f"v_mul_f32 v{t}, {fb(-1.4426950408889634)}, v{r}")
        for r,t in zip(rs,ts): A(f"v_exp_f32 v{t}, v{t}")
        for r,t in zip(rs,ts): A(f"v_add_f32 v{t}, 1.0, v{t}")
        for r,t in zip(rs,ts): A(f"v_rcp_f32 v{t}, v{t}")
        for r,t in zip(rs,ts): A(f"v_mul_f32 v{r}, v{r}, v{t}")
    def rbf(a,b,t):
        A(f"v_cvt_pk_bf16_f32 v{t}, v{a}, v{b}\nv_lshlrev_b32 v{a}, 16, v{t}\nv_and_b32 v{b}, 0xffff0000, v{t}")

    A(f"; @launch grid=(256,1,1) block=(512,1,1) lds={LDSN}")
    A('.amdgcn_target "amdgcn-amd-amdhsa--gfx950"')
    A(f".text\n.globl {K}\n.p2align 8\n.type {K},@function\n{K}:")
    A(f"""s_cmp_ge_u32 s2, 256
    s_cbranch_scc1 L_end
    s_load_dwordx16 s[4:19], s[0:1], 0
    s_load_dwordx8 s[20:27], s[0:1], 64
    s_load_dwordx2 s[28:29], s[0:1], 96
    v_lshrrev_b32 v4, 6, v0
    v_and_b32 v1, 63, v0
    v_readfirstlane_b32 s3, v4
    v_and_b32 v2, 15, v0
    v_lshrrev_b32 v3, 4, v1
    v_mov_b32 v4, 0
    v_mov_b32 v5, 0
    ds_write_b64 v4, v[4:5]
    s_lshr_b32 s30, s2, 6
    s_and_b32 s31, s2, 31
    s_lshr_b32 s33, s2, 5
    s_and_b32 s32, s33, 1
    s_and_b32 s34, s2, 63""")
    if diag: A("v_mov_b32 v31, 0\nv_mov_b32 v47, 0")
    A("s_waitcnt lgkmcnt(0)")
    srd(44,28,WSN)
    A("s_barrier\ns_cmp_ge_u32 s3, 4\ns_cbranch_scc1 L_H")
    stamp(0,47)
    srd(36,6,0x8000000); srd(40,8,0x8000000)
    A(f"""s_lshl_b32 s88, s30, 25
    s_lshl_b32 s89, s31, 20
    s_add_u32 s88, s88, s89
    s_lshl_b32 s89, s32, 19
    s_add_u32 s88, s88, s89
    s_lshl_b32 s89, s3, 12
    s_add_u32 s88, s88, s89
    v_lshl_add_u32 v4, v1, 4, s88""")
    RING=256-16*NP; Q=8; R=12; AA=20; BB=24; DD=26; AOP=(20,28); ACC=32; MK=36
    assert RING>=48
    def issue(n):
        s=36 if n<32 else 40
        A(f"s_mov_b32 s88, {(n%32)*16384}")
        for t in range(4):
            r=RING+16*(n%NP)+4*t
            A(f"buffer_load_dwordx4 v[{r}:{r+3}], v4, s[{s}:{s+3}], s88 offen offset:{t*1024} nt")
    def consumeK(n):
        b=RING+16*(n%NP)
        for k in range(4):
            for t in range(4):
                A(f"v_dot2_f32_bf16 v{AA+t}, v{b+4*t+k}, v{Q+k}, {'0' if k==0 else 'v%d'%(AA+t)}")
        for t in range(4):
            A(f"v_add_f32_dpp v{BB+t//2}, v{AA+t}, v{AA+t} row_ror:8 row_mask:0xf bank_mask:{'0x3' if t%2==0 else '0xc'}")
        A(f"v_add_f32_dpp v{DD}, v{BB}, v{BB} row_half_mirror row_mask:0xf bank_mask:0x5")
        A(f"v_add_f32_dpp v{DD}, v{BB+1}, v{BB+1} row_half_mirror row_mask:0xf bank_mask:0xa")
        A(f"v_add_f32_dpp v{DD}, v{DD}, v{DD} quad_perm:[1,0,3,2] row_mask:0xf bank_mask:0xf")
        if n%4==0:
            A(f"v_add_f32_dpp v{R+n//4}, v{DD}, v{DD} quad_perm:[2,3,0,1] row_mask:0xf bank_mask:0xf")
        else:
            A(f"v_add_f32_dpp v{DD}, v{DD}, v{DD} quad_perm:[2,3,0,1] row_mask:0xf bank_mask:0xf")
            A(f"v_cndmask_b32 v{R+n//4}, v{R+n//4}, v{DD}, s[{48+2*(n%4)}:{49+2*(n%4)}]")
    def softmax():
        A(f"v_max3_f32 v20, v{R}, v{R+1}, v{R+2}\nv_max3_f32 v21, v{R+3}, v{R+4}, v{R+5}\nv_max3_f32 v20, v20, v{R+6}, v{R+7}\nv_max_f32 v20, v20, v21")
        rowsum([20],'max'); xrow([20],[21],'max')
        A(f"s_mov_b32 s89, {fb(C_EXP)}\nv_mul_f32 v20, s89, v20")
        for i in range(8): A(f"v_fma_f32 v{R+i}, v{R+i}, s89, -v20")
        for i in range(8): A(f"v_exp_f32 v{R+i}, v{R+i}")
        for i in range(8): A(f"v_cvt_pk_bf16_f32 v{R+i}, v{R+i}, v{R+i}")
        for i in range(8): A(f"v_and_b32 v{22+i}, 0xffff0000, v{R+i}")
        A("v_add_f32 v21, v22, v23\nv_add_f32 v24, v24, v25\nv_add_f32 v26, v26, v27\nv_add_f32 v28, v28, v29\nv_add_f32 v21, v21, v24\nv_add_f32 v26, v26, v28\nv_add_f32 v21, v21, v26")
        rowsum([21]); xrow([21],[22])
        A(f"s_lshl_b32 s89, s3, 3\nv_mov_b32 v22, s89\nds_write_b64 v22, v[20:21] offset:{L_ST}")
        ldsinc(L_CS,22)
    vcount=[0]
    def buildA(n,t):
        a=AOP[(n*4+t)%2]; c={0:0,2:1,1:2,3:3}[t]*4+(n%4)
        for r in range(4):
            A(f"v_and_b32_dpp v{a+r}, v{R+(n-32)//4}, v{MK+r} row_newbcast:{c} row_mask:0xf bank_mask:0xf")
    def consumeV(n,waits=None):
        b=RING+16*(n%NP)
        if n==32: buildA(n,0)
        for t in range(4):
            if (n,t)!=(63,3): buildA(*((n,t+1) if t<3 else (n+1,0)))
            if waits: A(f"s_waitcnt vmcnt({waits[t]})")
            a=AOP[(n*4+t)%2]
            A(f"v_mfma_f32_16x16x32_bf16 v[{ACC}:{ACC+3}], v[{a}:{a+3}], v[{b+4*t}:{b+4*t+3}], {'0' if (n,t)==(32,0) else 'v[%d:%d]'%(ACC,ACC+3)}")
    def consume(n,waits=None):
        if n<32:
            consumeK(n)
            if n==31: stamp(3,47); softmax()
        else: consumeV(n,waits)
    for n in range(LA): issue(n)
    for pi in range(1,4):
        m=sum(1<<(4*k+pi) for k in range(8))
        A(f"s_mov_b32 s{48+2*pi}, {hex(m)}\ns_mov_b32 s{49+2*pi}, {hex(m)}")
    A("v_and_b32 v5, 1, v2\nv_mov_b32 v6, 0xffff\nv_lshlrev_b32 v5, 4, v5\nv_lshlrev_b32 v6, v5, v6\nv_lshrrev_b32 v5, 1, v2")
    for r in range(4): A(f"v_cmp_eq_u32 vcc, {r}, v5\nv_cndmask_b32 v{MK+r}, 0, v6, vcc")
    A(f"v_lshlrev_b32 v5, 4, v2")
    for n in range(LA,NP):
        A(f"s_waitcnt vmcnt({4*(LA-1)})"); issue(n)
    stamp(1,47)
    A(f"s_barrier\nds_read_b128 v[{Q}:{Q+3}], v5 offset:{L_Q}\ns_waitcnt lgkmcnt(0)")
    stamp(2,47)
    issued=NP; done=0; landed=NP-LA
    step=0
    while issued<64:
        if issued-done>=NP:
            assert done<landed
            consume(done); done+=1
        A(f"s_waitcnt vmcnt({4*(LA-1)})"); landed=issued-LA+1
        issue(issued); issued+=1
        k=1 if step<LA else 2
        step+=1
        while k and done<landed:
            consume(done); done+=1; k-=1
    while done<64:
        rem=64-done
        if done<landed: consume(done)
        else: consume(done,[4*rem-1-t for t in range(4)])
        done+=1
    A(f"""s_lshl_b32 s89, s3, 8
    v_lshl_add_u32 v5, v3, 3, v5
    v_add_u32 v5, s89, v5
    s_mov_b32 exec_hi, 0
    v_cvt_pk_bf16_f32 v20, v{ACC}, v{ACC+1}
    v_cvt_pk_bf16_f32 v21, v{ACC+2}, v{ACC+3}
    ds_write_b64 v5, v[20:21] offset:{L_O}
    s_waitcnt lgkmcnt(0)
    s_barrier""")
    stamp(4,47); dump(47)
    A("s_endpgm")
    A("L_H:\ns_load_dwordx2 s[84:85], s[28:29], 0\ns_sub_u32 s35, s3, 4")
    stamp(0,31)
    srd(48,4,4096); srd(52,10,0x400000); srd(56,12,0x400000); srd(60,16,1835008); srd(64,18,1835008)
    srd(68,20,4096); srd(72,22,0x300000); srd(76,24,4096); srd(80,26,256)
    A("s_mov_b32 s86, 0x05040100\ns_mov_b32 s87, 0x07060302")
    A("v_lshrrev_b32 v6, 2, v2")
    A("v_lshlrev_b32 v7, 4, v1")
    A("s_cmp_ge_u32 s2, 48\ns_cbranch_scc1 L_noM1")
    A(f"""v_lshlrev_b32 v8, 10, v6
    v_lshl_add_u32 v8, v3, 4, v8
    s_lshl_b32 s88, s35, 8
    v_mul_u32_u24 v9, {8*6144}, v3
    v_lshl_add_u32 v9, v2, 3, v9
    s_mul_i32 s94, s35, {128*6144}
    s_lshl_b32 s89, s2, 7
    s_add_u32 s94, s94, s89""")
    for s in range(4): A(f"buffer_load_dwordx4 v[{144+4*s}:{147+4*s}], v8, s[68:71], s88 offen offset:{s*64}")
    for s in range(4):
        for j in range(8):
            r=80+16*s+2*j
            A(f"s_add_u32 s89, s94, {(32*s+j)*6144}\nbuffer_load_dwordx2 v[{r}:{r+1}], v9, s[72:75], s89 offen nt")
    A("L_noM1:")
    A("s_cmp_lg_u32 s35, 1\ns_cbranch_scc1 L_noQ1")
    A(f"""v_lshlrev_b32 v8, 10, v3
    v_lshl_add_u32 v9, v2, 6, v8
    v_lshl_add_u32 v8, v2, 3, v8
    s_lshl_b32 s88, s33, 7
    v_lshlrev_b32 v10, 16, v3
    v_lshl_add_u32 v10, v2, 4, v10
    s_lshl_b32 s94, s33, 19
    s_lshl_b32 s89, s31, 8
    s_add_u32 s94, s94, s89""")
    for k in range(4): A(f"buffer_load_dwordx4 v[{48+4*k}:{51+4*k}], v9, s[48:51], 0 offen offset:{16*k}")
    A("buffer_load_dwordx2 v[12:13], v8, s[48:51], s88 offen")
    for s in range(2):
        for j in range(8):
            r=192+32*s+4*j
            A(f"s_add_u32 s89, s94, {(32*s+j)*8192}\nbuffer_load_dwordx4 v[{r}:{r+3}], v10, s[52:55], s89 offen nt")
    A("L_noQ1:")
    A("s_cmp_lg_u32 s35, 2\ns_cbranch_scc1 L_noC1")
    A(f"""v_mov_b32 v12, -1
    v_mov_b32 v13, -1
    v_mov_b32 v14, -1
    v_mov_b32 v15, -1
    v_cmp_gt_u32 vcc, 48, v1
    s_lshl_b32 s88, s2, 11
    s_add_u32 s89, s88, {ZO}
    s_add_u32 s88, s88, {YO}
    v_cndmask_b32 v16, 0, v12, vcc
    v_cndmask_b32 v17, 0, v12, vcc
    v_cndmask_b32 v18, 0, v12, vcc
    v_cndmask_b32 v19, 0, v12, vcc
    buffer_store_dwordx4 v[12:15], v7, s[44:47], s88 offen sc1
    buffer_store_dwordx4 v[12:15], v7, s[44:47], s88 offen offset:1024 sc1
    buffer_store_dwordx4 v[12:15], v7, s[44:47], s89 offen sc1
    buffer_store_dwordx4 v[16:19], v7, s[44:47], s89 offen offset:1024 sc1
    s_lshl_b32 s88, s2, 4
    s_add_u32 s88, s88, {X1O}
    s_mov_b64 exec, 1
    buffer_store_dwordx4 v[12:15], v7, s[44:47], s88 offen sc1
    s_mov_b64 exec, -1""")
    A("L_noC1:\ns_waitcnt lgkmcnt(0)\ns_add_u32 s84, s84, 1")
    A("s_cmp_ge_u32 s2, 48\ns_cbranch_scc1 L_noM2")
    A("s_cmp_lg_u32 s35, 1\ns_cbranch_scc1 L_mw0\ns_waitcnt vmcnt(53)\ns_branch L_mw1\nL_mw0:\ns_waitcnt vmcnt(32)\nL_mw1:")
    for s in range(4):
        unpack(144+4*s,4,14); silu(range(14,22),range(22,30))
        for k in range(4): A(f"v_cvt_pk_bf16_f32 v{144+4*s+k}, v{14+2*k}, v{15+2*k}")
    A("s_cmp_lg_u32 s35, 1\ns_cbranch_scc1 L_mw2\ns_waitcnt vmcnt(21)\ns_branch L_mw3\nL_mw2:\ns_waitcnt vmcnt(0)\nL_mw3:")
    stamp(1,31)
    for s in range(4):
        transpose(80+16*s,64+16*s,4)
        for e in range(4):
            A(f"v_mfma_f32_16x16x32_bf16 v[{32+4*e}:{35+4*e}], v[{144+4*s}:{147+4*s}], v[{64+16*s+4*e}:{67+16*s+4*e}], {'0' if s==0 else 'v[%d:%d]'%(32+4*e,35+4*e)}")
    A(f"s_lshl_b32 s88, s35, 10\nv_add_u32 v8, s88, v7")
    A("v_mov_b32 v16, v32\nv_mov_b32 v17, v36\nv_mov_b32 v18, v40\nv_mov_b32 v19, v44")
    A(f"ds_write_b128 v8, v[16:19] offset:{L_MP}")
    ldsinc(L_CM,14)
    A("s_cmp_lg_u32 s35, 0\ns_cbranch_scc1 L_noM2")
    ldsspin(L_CM,4,14,0)
    for w in range(1,4): A(f"ds_read_b128 v[{16+4*w}:{19+4*w}], v7 offset:{L_MP+1024*w}" if w<3 else f"ds_read_b128 v[32:35], v7 offset:{L_MP+1024*w}")
    A("s_waitcnt lgkmcnt(0)")
    for k in range(4): A(f"v_add_f32 v{16+k}, v{16+k}, v{20+k}\nv_add_f32 v{24+k}, v{24+k}, v{32+k}\nv_add_f32 v{16+k}, v{16+k}, v{24+k}")
    A(f"""v_cvt_pk_bf16_f32 v20, v16, v17
    v_cvt_pk_bf16_f32 v21, v18, v19
    v_mov_b32 v22, s84
    v_mov_b32 v23, s85
    s_lshl_b32 s88, s2, 10
    s_add_u32 s88, s88, {MODO}
    buffer_store_dwordx4 v[20:23], v7, s[44:47], s88 offen sc1""")
    stamp(2,31)
    A("L_noM2:\ns_nop 1")
    A("s_cmp_lg_u32 s35, 1\ns_cbranch_scc1 L_noQ2")
    A("s_waitcnt vmcnt(16)")
    unpack(48,16,64)
    A("v_add_f32 v14, v64, v65")
    for i in range(2,32): A(f"v_add_f32 v14, v14, v{64+i}")
    rowsum([14])
    A(f"v_mul_f32 v14, {fb(1/512)}, v14")
    for i in range(32): A(f"v_sub_f32 v{64+i}, v{64+i}, v14")
    A("v_mul_f32 v15, v64, v64")
    for i in range(1,32): A(f"v_fmac_f32 v15, v{64+i}, v{64+i}")
    rowsum([15])
    A(f"v_mov_b32 v16, {fb(1e-5)}\nv_fmac_f32 v16, {fb(1/512)}, v15\nv_rsq_f32 v15, v16")
    unpack(12,2,16)
    for i in range(4): A(f"v_sub_f32 v{16+i}, v{16+i}, v14\nv_mul_f32 v{16+i}, v{16+i}, v15")
    A("s_waitcnt vmcnt(0)")
    transpose(192,160,8); transpose(224,192,8)
    A(f"s_lshl_b32 s88, s33, 10\ns_add_u32 s88, s88, {MODO}\ns_add_u32 s89, s88, 8192")
    stamp(3,31)
    poll(lambda: A("buffer_load_dwordx4 v[20:23], v7, s[44:47], s88 offen sc1\nbuffer_load_dwordx4 v[24:27], v7, s[44:47], s89 offen sc1"), chk_tags([20,24]))
    stamp(4,31)
    unpack(20,2,64); unpack(24,2,68)
    for i in range(4): A(f"v_add_f32 v{68+i}, 1.0, v{68+i}\nv_fma_f32 v{16+i}, v{16+i}, v{68+i}, v{64+i}")
    A(f"""v_cvt_pk_bf16_f32 v20, v16, v17
    v_cvt_pk_bf16_f32 v21, v18, v19
    v_lshlrev_b32 v8, 3, v1
    v_lshlrev_b32 v9, 7, v6
    v_lshl_add_u32 v9, v3, 4, v9
    ds_write_b64 v8, v[20:21] offset:{L_HA}
    s_waitcnt lgkmcnt(0)
    ds_read_b128 v[20:23], v9 offset:{L_HA}
    ds_read_b128 v[24:27], v9 offset:{L_HA+64}
    s_lshl_b32 s88, s31, 15
    s_lshl_b32 s89, s33, 10
    s_add_u32 s88, s88, {QPO}
    s_add_u32 s89, s89, s88
    v_lshlrev_b32 v8, 13, v3
    v_lshl_add_u32 v8, v2, 6, v8
    s_waitcnt lgkmcnt(0)""")
    for s in range(2):
        for e in range(8):
            A(f"v_mfma_f32_16x16x32_bf16 v[{32+4*e}:{35+4*e}], v[{20+4*s}:{23+4*s}], v[{160+32*s+4*e}:{163+32*s+4*e}], {'0' if s==0 else 'v[%d:%d]'%(32+4*e,35+4*e)}")
    for k in range(4):
        A(f"v_mov_b32 v{66+4*k}, s84\nv_mov_b32 v{67+4*k}, s85")
    for k in range(4):
        A(f"v_mov_b32 v{64+4*k}, v{32+8*k}\nv_mov_b32 v{65+4*k}, v{36+8*k}")
        A(f"buffer_store_dwordx4 v[{64+4*k}:{67+4*k}], v8, s[44:47], s89 offen offset:{16*k} sc1")
    A("s_lshl_b32 s89, s30, 13\ns_add_u32 s88, s88, s89\ns_add_u32 s89, s88, 4096")
    stamp(5,31)
    def qld():
        for j in range(8): A(f"buffer_load_dwordx4 v[{96+4*j}:{99+4*j}], v7, s[44:47], s{88+j//4} offen offset:{(j%4)*1024} sc1")
    poll(qld,chk_tags([96+4*j for j in range(8)]))
    for j in range(1,8): A(f"v_add_f32 v96, v96, v{96+4*j}\nv_add_f32 v97, v97, v{97+4*j}")
    A(f"v_cvt_pk_bf16_f32 v96, v96, v97\nv_lshlrev_b32 v8, 2, v1\nds_write_b32 v8, v96 offset:{L_Q}")
    stamp(6,31)
    A("L_noQ2:\ns_waitcnt vmcnt(0) lgkmcnt(0)\ns_barrier")
    stamp(7,31)
    A("s_cmp_lg_u32 s35, 2\ns_cbranch_scc1 L_noC2")
    A("s_mov_b64 exec, 1\nv_mov_b32 v12, 1\nv_mov_b32 v13, 0\nbuffer_atomic_add v12, v13, s[80:83], 0 offen sc1\ns_mov_b64 exec, -1\nL_noC2:")
    A(f"s_mul_i32 s95, s35, 6144\nv_add_u32 v11, s95, v7")
    A("s_sub_u32 s36, s2, 64\ns_cmp_ge_u32 s36, 56\ns_cbranch_scc1 L_noF1")
    A(f"""v_mul_u32_u24 v8, {8*3584}, v3
    v_lshl_add_u32 v8, v2, 2, v8
    s_mul_i32 s94, s35, {128*3584}
    s_lshl_b32 s89, s36, 6
    s_add_u32 s94, s94, s89""")
    for s in range(4):
        for j in range(8):
            A(f"s_add_u32 s89, s94, {(32*s+j)*3584}\nbuffer_load_dword v{64+8*s+j}, v8, s[60:63], s89 offen nt")
    A(f"""v_lshlrev_b32 v8, 13, v3
    v_lshl_add_u32 v8, v2, 4, v8
    s_lshl_b32 s94, s36, 15
    s_lshl_b32 s89, s35, 8
    s_add_u32 s94, s94, s89
    s_add_u32 s89, s94, 4096""")
    for j in range(8): A(f"buffer_load_dwordx4 v[{96+4*j}:{99+4*j}], v8, s[64:67], s{94 if j<4 else 89} offen offset:{(j%4)*1024} nt")
    A(f"""v_lshrrev_b32 v8, 3, v1
    v_and_b32 v9, 7, v1
    v_lshlrev_b32 v8, 10, v8
    v_lshl_add_u32 v8, v9, 5, v8
    s_lshl_b32 s88, s35, 8
    s_add_u32 s89, s88, {MODO+32*1024}
    s_add_u32 s88, s88, {MODO+24*1024}""")
    def fld():
        for k in range(4): A(f"buffer_load_dwordx4 v[{128+4*k}:{131+4*k}], v8, s[44:47], s{88+k//2} offen offset:{(k%2)*16} sc1")
    poll(fld,chk_tags([128,132,136,140]))
    for k in range(4): unpack(128+4*k,2,144+4*k)
    for i in range(8): A(f"v_add_f32 v{152+i}, 1.0, v{152+i}")
    for i in range(4): rbf(152+2*i,153+2*i,12)
    for k in range(4): A(f"ds_write_b128 v11, v[{144+4*k}:{147+4*k}] offset:{L_PARK+1024*k}")
    for s in range(4): transpose(64+8*s,192+8*s,2)
    transpose(96,224,8)
    A("L_noF1:\ns_waitcnt lgkmcnt(0)")
    A(f"""v_lshlrev_b32 v8, 13, v3
    v_lshl_add_u32 v8, v2, 4, v8
    s_lshl_b32 s94, s31, 17
    s_lshl_b32 s89, s35, 8
    s_add_u32 s94, s94, s89""")
    wz=[96,128,160,32]
    for s in range(4):
        for j in range(8):
            if j%4==0: A(f"s_add_u32 s89, s94, {(32*s+j)*1024}")
            A(f"buffer_load_dwordx4 v[{wz[s]+4*j}:{wz[s]+4*j+3}], v8, s[56:59], s89 offen offset:{(j%4)*1024} nt")
        if s>=1:
            A("s_waitcnt vmcnt(8)"); transpose(wz[s-1],64+32*(s-1),8)
    A("s_waitcnt vmcnt(0)"); transpose(32,160,8)
    stamp(8,31)
    A("s_cmp_lg_u32 s35, 0\ns_cbranch_scc1 L_noS")
    A(f"""v_and_b32 v9, 3, v1
    v_lshrrev_b32 v8, 1, v9
    v_lshlrev_b32 v8, 4, v8
    s_lshr_b32 s88, s34, 3
    s_lshl_b32 s88, s88, 10
    s_and_b32 s89, s34, 7
    s_lshl_b32 s89, s89, 5
    s_add_u32 s88, s88, s89
    s_lshl_b32 s89, s30, 8
    s_add_u32 s88, s88, s89
    s_add_u32 s89, s88, {MODO+40*1024}
    s_add_u32 s88, s88, {MODO+16*1024}
    s_lshl_b32 s94, s2, 4
    v_lshlrev_b32 v10, 2, v9
    buffer_load_dword v12, v10, s[48:51], s94 offen""")
    poll(lambda: A("buffer_load_dwordx4 v[16:19], v8, s[44:47], s88 offen sc1\nbuffer_load_dwordx4 v[20:23], v8, s[44:47], s89 offen sc1"), chk_tags([16,20]))
    A("v_and_b32 v9, 1, v1\nv_cmp_eq_u32 vcc, 1, v9\nv_cndmask_b32 v13, v16, v17, vcc\nv_cndmask_b32 v14, v20, v21, vcc")
    unpack(12,3,24)
    A(f"ds_write_b128 v11, v[24:27] offset:{L_PARK+4096}\nds_write_b64 v11, v[28:29] offset:{L_PARK+5120}")
    ldsspin(L_CS,4,14,4)
    A(f"""ds_read_b128 v[16:19], v15 offset:{L_ST}
    ds_read_b128 v[20:23], v15 offset:{L_ST+16}
    s_waitcnt lgkmcnt(0)
    v_max3_f32 v24, v16, v18, v20
    v_max_f32 v24, v24, v22""")
    for w in range(4): A(f"v_sub_f32 v{32+w}, v{16+2*w}, v24\nv_exp_f32 v{32+w}, v{32+w}")
    A(f"""v_mul_f32 v25, v32, v17
    v_fmac_f32 v25, v33, v19
    v_fmac_f32 v25, v34, v21
    v_fmac_f32 v25, v35, v23
    v_mov_b32 v26, s84
    v_mov_b32 v27, s85
    s_lshl_b32 s88, s2, 6
    s_add_u32 s88, s88, {STO}
    s_xor_b32 s89, s88, {32*64}
    s_mov_b64 exec, 1
    buffer_store_dwordx4 v[24:27], v15, s[44:47], s88 offen sc1""")
    poll(lambda: A("buffer_load_dwordx4 v[36:39], v15, s[44:47], s89 offen sc1"), chk_tags([36]),4)
    A(f"""v_max_f32 v40, v24, v36
    v_sub_f32 v41, v24, v40
    v_sub_f32 v42, v36, v40
    v_exp_f32 v41, v41
    v_exp_f32 v42, v42
    v_mul_f32 v43, v41, v25
    v_fmac_f32 v43, v42, v37
    v_rcp_f32 v43, v43
    v_mul_f32 v41, v41, v43""")
    for w in range(4): A(f"v_mul_f32 v{32+w}, v{32+w}, v41")
    A(f"ds_write_b128 v15, v[32:35] offset:{L_F}")
    poll(lambda: A("buffer_load_dword v36, v15, s[80:83], 0 offen sc1"), lambda: A("v_cmp_gt_u32 vcc, 0x100, v36"),4)
    A("s_cmp_lg_u32 s2, 0\ns_cbranch_scc1 L_noE\nbuffer_store_dwordx2 v[26:27], v15, s[44:47], 0 offen sc1\nL_noE:\ns_mov_b64 exec, -1")
    stamp(9,31)
    A("L_noS:")
    A(f"""v_and_b32 v8, 3, v2
    v_lshlrev_b32 v8, 8, v8
    v_lshl_add_u32 v8, v3, 4, v8
    v_mov_b32 v10, 0
    v_lshlrev_b32 v9, 11, v2
    s_lshl_b32 s88, s30, 17
    s_lshl_b32 s89, s35, 15
    s_add_u32 s88, s88, s89
    s_lshl_b32 s89, s34, 5
    s_add_u32 s88, s88, s89
    s_add_u32 s88, s88, {YO}
    s_waitcnt lgkmcnt(0)
    s_barrier""")
    stamp(10,31)
    for s in range(4): A(f"ds_read_b128 v[{12+4*s}:{15+4*s}], v8 offset:{L_O+64*s}")
    A(f"ds_read_b128 v[4:7], v10 offset:{L_F}")
    for s in range(4):
        A(f"s_waitcnt lgkmcnt({0 if diag else 4-s})")
        for e in range(8):
            A(f"v_mfma_f32_16x16x32_bf16 v[{32+4*e}:{35+4*e}], v[{12+4*s}:{15+4*s}], v[{64+32*s+4*e}:{67+32*s+4*e}], {'0' if s==0 else 'v[%d:%d]'%(32+4*e,35+4*e)}")
    A("s_waitcnt lgkmcnt(0)\ns_mov_b64 exec, 0xffff")
    for hf in range(2):
        for r in range(4):
            for e in range(4*hf,4*hf+4):
                A(f"v_mul_f32 v{64+e}, v4, v{32+4*e}" if r==0 else f"v_fmac_f32 v{64+e}, v{4+r}, v{32+4*e+r}")
        for e in range(4*hf,4*hf+4): A(f"v_min_u32 v{64+e}, -2, v{64+e}")
        A(f"buffer_store_dwordx4 v[{64+4*hf}:{67+4*hf}], v9, s[44:47], s88 offen offset:{16*hf} sc1")
    A("s_mov_b64 exec, -1\nv_lshlrev_b32 v7, 4, v1\nv_lshlrev_b32 v5, 3, v1\nv_lshrrev_b32 v6, 2, v2")
    stamp(11,31)
    def gather(sreg):
        def ld():
            for k in range(4): A(f"buffer_load_dwordx2 v[{80+2*k}:{81+2*k}], v5, s[44:47], s{sreg} offen offset:{512*k} sc1")
        poll(ld,chk_sent(80,8,12),0)
        A("v_pk_add_f32 v[80:81], v[80:81], v[82:83]\nv_pk_add_f32 v[84:85], v[84:85], v[86:87]\nv_pk_add_f32 v[80:81], v[80:81], v[84:85]")
        for sh in (4,8):
            for r in (80,81): A(f"v_add_f32_dpp v{r}, v{r}, v{r} row_ror:{sh} row_mask:0xf bank_mask:0xf")
        xrow([80,81],[82,83])
        rbf(80,81,82)
    A("s_cmp_lg_u32 s35, 0\ns_cbranch_scc1 L_noR1")
    A(f"""ds_read_b128 v[72:75], v11 offset:{L_PARK+4096}
    ds_read_b64 v[76:77], v11 offset:{L_PARK+5120}
    s_lshl_b32 s37, s2, 11
    s_add_u32 s38, s37, {ZO}
    s_add_u32 s37, s37, {YO}
    s_lshl_b32 s39, s2, 4
    s_add_u32 s89, s39, {X1O}
    v_lshlrev_b32 v4, 2, v1
    s_waitcnt lgkmcnt(0)""")
    gather(37)
    A("v_mul_f32 v80, v80, v74\nv_mul_f32 v81, v81, v75"); rbf(80,81,82)
    A("""v_add_f32 v72, v72, v80
    v_add_f32 v73, v73, v81
    v_cvt_pk_bf16_f32 v82, v72, v73
    s_mov_b64 exec, 0xf
    v_min_u32 v83, -2, v82
    buffer_store_dword v83, v4, s[44:47], s89 offen sc1
    s_mov_b64 exec, -1
    v_lshlrev_b32 v72, 16, v82
    v_and_b32 v73, 0xffff0000, v82""")
    stamp(12,31)
    A("L_noR1:\ns_cmp_ge_u32 s36, 56\ns_cbranch_scc1 L_noF2")
    for k in range(4): A(f"ds_read_b128 v[{96+4*k}:{99+4*k}], v11 offset:{L_PARK+1024*k}")
    A(f"""s_lshl_b32 s88, s35, 10
    s_add_u32 s88, s88, {X1O}
    s_mul_i32 s89, s35, {H2S}
    v_add_u32 v8, s89, v7
    v_mul_u32_u24 v9, {H2S}, v6
    v_lshl_add_u32 v9, v3, 4, v9
    s_lshl_b32 s89, s35, 8
    v_add_u32 v9, s89, v9
    v_lshl_add_u32 v16, v6, 6, s89
    v_lshl_add_u32 v16, v3, 4, v16
    v_lshl_add_u32 v17, v1, 2, s89
    s_lshl_b32 s89, s35, 9
    v_add_u32 v10, s89, v5
    v_lshlrev_b32 v18, 17, v3
    v_lshl_add_u32 v18, v2, 11, v18
    s_lshl_b32 s94, s35, 15
    s_lshl_b32 s89, s36, 5
    s_add_u32 s94, s94, s89
    s_add_u32 s94, s94, {ZO}
    s_waitcnt lgkmcnt(0)""")
    poll(lambda: A("buffer_load_dwordx4 v[112:115], v7, s[44:47], s88 offen sc1"), chk_sent(112,4,12),0)
    stamp(13,31)
    unpack(112,4,116)
    A("v_pk_add_f32 v[12:13], v[116:117], v[118:119]\nv_pk_add_f32 v[14:15], v[120:121], v[122:123]\nv_pk_add_f32 v[12:13], v[12:13], v[14:15]\nv_add_f32 v12, v12, v13")
    rowsum([12]); xrow([12],[13])
    A(f"v_mul_f32 v12, {fb(1/512)}, v12")
    for i in range(8): A(f"v_sub_f32 v{116+i}, v{116+i}, v12")
    A("v_mul_f32 v13, v116, v116\nv_mul_f32 v14, v117, v117")
    for i in range(2,8): A(f"v_fmac_f32 v{13+i%2}, v{116+i}, v{116+i}")
    A("v_add_f32 v13, v13, v14")
    rowsum([13]); xrow([13],[14])
    A(f"v_mov_b32 v14, {fb(1e-5)}\nv_fmac_f32 v14, {fb(1/512)}, v13\nv_rsq_f32 v13, v14")
    for i in range(8): A(f"v_mul_f32 v{116+i}, v{116+i}, v{104+i}")
    for i in range(8): A(f"v_fma_f32 v{116+i}, v{116+i}, v13, v{96+i}")
    for i in range(4): A(f"v_cvt_pk_bf16_f32 v{112+i}, v{116+2*i}, v{117+2*i}")
    A(f"ds_write_b128 v8, v[112:115] offset:{L_H2}\ns_waitcnt lgkmcnt(0)\ns_barrier")
    for s in range(4): A(f"ds_read_b128 v[{128+4*s}:{131+4*s}], v9 offset:{L_H2+64*s}")
    for s in range(4):
        A(f"s_waitcnt lgkmcnt({3-s})")
        for e in range(2):
            A(f"v_mfma_f32_16x16x32_bf16 v[{32+4*e}:{35+4*e}], v[{128+4*s}:{131+4*s}], v[{192+8*s+4*e}:{195+8*s+4*e}], {'0' if s==0 else 'v[%d:%d]'%(32+4*e,35+4*e)}")
    A(f"ds_write2_b32 v10, v32, v36 offset0:0 offset1:1" if False else f"v_mov_b32 v33, v36\nds_write_b64 v10, v[32:33] offset:{L_FP}")
    A("s_waitcnt lgkmcnt(0)\ns_barrier")
    for w in range(4): A(f"ds_read_b64 v[{144+2*w}:{145+2*w}], v5 offset:{L_FP+512*w}")
    A("s_waitcnt lgkmcnt(0)\nv_pk_add_f32 v[144:145], v[144:145], v[146:147]\nv_pk_add_f32 v[148:149], v[148:149], v[150:151]\nv_pk_add_f32 v[144:145], v[144:145], v[148:149]")
    rbf(144,145,146); silu([144,145],[146,147])
    A(f"v_cvt_pk_bf16_f32 v144, v144, v145\nds_write_b32 v17, v144 offset:{L_FA}\ns_waitcnt lgkmcnt(0)\nds_read_b128 v[148:151], v16 offset:{L_FA}\ns_waitcnt lgkmcnt(0)")
    for e in range(8): A(f"v_mfma_f32_16x16x32_bf16 v[{32+4*e}:{35+4*e}], v[148:151], v[{224+4*e}:{227+4*e}], 0")
    for hf in range(2):
        for e in range(4*hf,4*hf+4): A(f"v_min_u32 v{152+e}, -2, v{32+4*e}")
        A(f"buffer_store_dwordx4 v[{152+4*hf}:{155+4*hf}], v18, s[44:47], s94 offen offset:{16*hf} sc1")
    stamp(14,31)
    A("L_noF2:\ns_cmp_lg_u32 s35, 0\ns_cbranch_scc1 L_fin")
    gather(38)
    A("v_mul_f32 v80, v80, v76\nv_mul_f32 v81, v81, v77"); rbf(80,81,82)
    A("""v_add_f32 v72, v72, v80
    v_add_f32 v73, v73, v81
    v_cvt_pk_bf16_f32 v82, v72, v73
    s_mov_b64 exec, 0xf
    buffer_store_dword v82, v4, s[76:79], s39 offen
    s_mov_b64 exec, -1""")
    A("L_fin:")
    if diag: A("s_waitcnt vmcnt(0)")
    stamp(15,31); dump(31)
    A("L_end:\ns_endpgm")
    A(f""".section .rodata,"a"
    .p2align 6
    .amdhsa_kernel {K}
    .amdhsa_next_free_vgpr 256
    .amdhsa_next_free_sgpr 102
    .amdhsa_accum_offset 256
    .amdhsa_group_segment_fixed_size 0
    .amdhsa_kernarg_size 104
    .amdhsa_user_sgpr_count 2
    .amdhsa_user_sgpr_kernarg_segment_ptr 1
    .amdhsa_system_sgpr_workgroup_id_x 1
    .end_amdhsa_kernel""")
    return A.finish()
if __name__=="__main__":
    out=sys.argv[1]; kw={}
    for a in sys.argv[2:]:
        k,v=a.split('='); kw[k]=int(v)
    base={k:kw.pop(k) for k in ('diag','LA','NP') if k in kw}
    open(out,'w').write(gen(opt=kw,**base))
```
